```python
import torch

def _softmax(x, axis=-1):
    return torch.softmax(x, dim=axis)

def _gelu(x):
    return torch.nn.functional.gelu(x, approximate='tanh')

def _silu(x):
    return torch.nn.functional.silu(x)

def _sigmoid(x):
    return torch.sigmoid(x)

def _layernorm(x, axis=-1, eps=1e-05):
    m = x.mean(dim=axis, keepdim=True)
    v = x.var(dim=axis, keepdim=True, unbiased=False)
    return (x - m) / torch.sqrt(v + eps)

def _scatter_add(tgt, idx, src, axis=0):
    return tgt.clone().index_add_(axis, idx, src)

def _segment_sum(src, seg, n):
    out = torch.zeros((n,) + src.shape[1:], dtype=src.dtype)
    return out.index_add_(0, seg, src)

def _pad(x, pw):
    flat = tuple((v for pair in reversed(pw) for v in pair))
    return torch.nn.functional.pad(x, flat)
kernel_name = 'adaLN_cond__spectral_fnet__dense_activation_relu__prompt'

def setup_inputs():

    _w = lambda a: (lambda t: t.to(torch.bfloat16) if t.is_floating_point() else t)(torch.as_tensor(a))

    def _A_setup():
        B, S, D = (1, 2048, 512)
        ns = torch.arange(S)[:, None] * torch.arange(S)[None, :]
        nd = torch.arange(D)[:, None] * torch.arange(D)[None, :]
        Ws_re = torch.cos(-2.0 * torch.pi * ns / S).to(float)
        Ws_im = torch.sin(-2.0 * torch.pi * ns / S).to(float)
        Wd_re = torch.cos(-2.0 * torch.pi * nd / D).to(float)
        Wd_im = torch.sin(-2.0 * torch.pi * nd / D).to(float)
        return {'x': _w((lambda *s: torch.randn(*s, dtype=torch.bfloat16) * 0.1)(B, S, D)), 'dft_seq_re': _w(Ws_re), 'dft_seq_im': _w(Ws_im), 'dft_hid_re': _w(Wd_re), 'dft_hid_im': _w(Wd_im)}
    _A_in = _A_setup()

    def _B_setup():
        B, S, D, Dff = (1, 2048, 512, 1376)
        return {'x': _w((lambda *s: torch.randn(*s, dtype=torch.bfloat16) * 0.1)(B, S, D)), 'w1': _w((lambda *s: torch.randn(*s, dtype=torch.bfloat16) * 3.2)(D, Dff)), 'w2': _w((lambda *s: torch.randn(*s, dtype=torch.bfloat16) * 3.2)(Dff, D))}
    _B_in = _B_setup()
    return {'A_x': _A_in['x'], 'A_dft_seq_re': _A_in['dft_seq_re'], 'A_dft_seq_im': _A_in['dft_seq_im'], 'A_dft_hid_re': _A_in['dft_hid_re'], 'A_dft_hid_im': _A_in['dft_hid_im'], 'B_x': _B_in['x'], 'B_w1': _B_in['w1'], 'B_w2': _B_in['w2'], 'c': _w((lambda *s: torch.randn(*s, dtype=torch.bfloat16) * 0.2)(1, 512) * 8.0), 'w_mod': _w((lambda *s: torch.randn(*s, dtype=torch.bfloat16) * 0.2)(512, 6 * 512) * 512 ** (-0.5) * 8.0)}

def reference(A_x, A_dft_seq_re, A_dft_seq_im, A_dft_hid_re, A_dft_hid_im, B_x, B_w1, B_w2, c, w_mod):

    def _A_ref(x, dft_seq_re, dft_seq_im, dft_hid_re, dft_hid_im):
        a = torch.einsum('bsd,ed->bse', x, dft_hid_re)
        b = torch.einsum('bsd,ed->bse', x, dft_hid_im)
        y = torch.einsum('ts,bse->bte', dft_seq_re, a) - torch.einsum('ts,bse->bte', dft_seq_im, b)
        return y

    def _B_ref(x, w1, w2):
        h = torch.einsum('bsd,df->bsf', x, w1)
        zero = torch.zeros_like(h)
        h = torch.maximum(h, zero)
        return torch.einsum('bsf,fd->bsd', h, w2)
    x = A_x
    mod = (_silu(c) @ w_mod).reshape(c.shape[0], 6, 1, -1)
    sa, ca, ga, sb, cb, gb = (mod[:, 0].clone(), mod[:, 1].clone(), mod[:, 2].clone(), mod[:, 3].clone(), mod[:, 4].clone(), mod[:, 5].clone())
    h = _layernorm(x, axis=-1) * (1 + ca) + sa
    x = x + ga * _A_ref(h, A_dft_seq_re, A_dft_seq_im, A_dft_hid_re, A_dft_hid_im)
    h = _layernorm(x, axis=-1) * (1 + cb) + sb
    x = x + gb * _B_ref(h, B_w1, B_w2)
    return x
```

```python
import re

TRANS = ("v_exp_f32", "v_log_f32", "v_rcp_f32", "v_rsq_f32", "v_sqrt_f32", "v_sin_f32", "v_cos_f32")

def regs_of(tok):
    tok = tok.strip()
    tok = tok.lstrip("-").strip("|")
    m = re.fullmatch(r"([vsa])(\d+)", tok)
    if m:
        return [(m.group(1), int(m.group(2)))]
    m = re.fullmatch(r"([vsa])\[(\d+):(\d+)\]", tok)
    if m:
        return [(m.group(1), i) for i in range(int(m.group(2)), int(m.group(3)) + 1)]
    if tok == "vcc":
        return [("s", 106), ("s", 107)]
    if tok == "vcc_lo":
        return [("s", 106)]
    if tok == "vcc_hi":
        return [("s", 107)]
    if tok == "m0":
        return [("s", 124)]
    if tok == "exec":
        return [("s", 126), ("s", 127)]
    return []

class Asm:
    def __init__(self):
        self.lines = []
        self.t = 0
        self.reset()
        self.uid = 0

    def reset(self):
        self.vw = {}
        self.mf = {}
        self.mc = {}
        self.sw = {}
        self.m0 = -100
        self.st = {}
        self.execw = -100

    def raw(self, s):
        self.lines.append(s)

    def label(self, name, pad=True):
        self.lines.append(name + ":")

    def newlabel(self, base="L"):
        self.uid += 1
        return f"{base}_{self.uid}"

    def flush_hazards(self, n=12):
        need = 0
        for r, (t, k) in self.vw.items():
            need = max(need, t + 3 + 1 - self.t)
        for r, (t, p, f, s) in self.mf.items():
            need = max(need, t + (12 if p == 8 else 8) + 1 - self.t)
        for r, t in self.sw.items():
            need = max(need, t + 5 + 1 - self.t)
        self._nop(need)

    def _nop(self, n):
        while n > 0:
            k = min(n, 16)
            self.lines.append(f"  s_nop {k-1}")
            self.t += k
            n -= k

    def __call__(self, text):
        for line in text.split("\n"):
            line = line.strip()
            if not line:
                continue
            self.ins(line)

    def ins(self, line):
        code = line.split(";")[0].strip()
        if code.endswith(":"):
            self.lines.append(code)
            return
        parts = code.split(None, 1)
        op = parts[0]
        rest = parts[1] if len(parts) > 1 else ""
        ops = []
        depth = 0
        cur = ""
        for ch in rest:
            if ch == "[":
                depth += 1
            if ch == "]":
                depth -= 1
            if ch == "," and depth == 0:
                ops.append(cur.strip())
                cur = ""
            else:
                cur += ch
        if cur.strip():
            ops.append(cur.strip())
        mods = ""
        if ops:
            sp = ops[-1].split(None, 1)
            if len(sp) > 1 and not ops[-1].startswith("hwreg"):
                ops[-1] = sp[0]
                mods = sp[1]
        need = 0
        def req(t_prod, ws):
            nonlocal need
            need = max(need, t_prod + ws + 1)

        rd, wr = [], []
        is_valu = op.startswith("v_")
        is_mfma = op.startswith("v_mfma")
        is_ds = op.startswith("ds_")
        is_vmem = op.startswith("buffer_") or op.startswith("global_")
        is_dpp = ("_dpp" in op) or ("quad_perm" in mods) or ("row_" in mods)
        is_perm = op.startswith("v_permlane")
        is_rl = op.startswith("v_readfirstlane") or op.startswith("v_readlane")
        is_dot = op.startswith("v_dot")
        if is_valu:
            if is_perm:
                rd = regs_of(ops[0]) + regs_of(ops[1]); wr = list(rd)
            elif op.startswith("v_cmp"):
                wr = regs_of(ops[0]); rd = sum((regs_of(o) for o in ops[1:]), [])
            elif op.startswith("v_add_co") or op.startswith("v_sub_co") or op.startswith("v_addc_co") or op.startswith("v_subb_co"):
                wr = regs_of(ops[0]) + regs_of(ops[1]); rd = sum((regs_of(o) for o in ops[2:]), [])
            else:
                wr = regs_of(ops[0]); rd = sum((regs_of(o) for o in ops[1:]), [])
                if op.startswith("v_fmac") or op.startswith("v_dot2c") or op.startswith("v_mac") or is_dpp or "d16" in op:
                    rd += regs_of(ops[0])
                if op.startswith("v_cndmask") and len(ops) == 3:
                    rd += regs_of("vcc")
        elif is_ds:
            if op.startswith("ds_read") or op.startswith("ds_bpermute") or op.startswith("ds_swizzle") or op.startswith("ds_permute"):
                wr = regs_of(ops[0]); rd = sum((regs_of(o) for o in ops[1:]), [])
            else:
                rd = sum((regs_of(o) for o in ops), [])
        elif is_vmem:
            lds = re.search(r"\blds\b", mods) is not None
            if op.startswith("buffer_load") and not lds:
                wr = regs_of(ops[0]); rd = sum((regs_of(o) for o in ops[1:]), [])
                if "d16" in op:
                    rd += regs_of(ops[0])
            elif op.startswith("buffer_atomic") and "sc0" in mods:
                wr = regs_of(ops[0]); rd = sum((regs_of(o) for o in ops), [])
            else:
                rd = sum((regs_of(o) for o in ops), [])
            if lds:
                req(self.m0, 1)
        else:
            if op in ("s_nop",):
                self.lines.append("  " + line)
                self.t += int(ops[0], 0) + 1
                return
            if op.startswith("s_cmp") or op.startswith("s_cbranch") or op in ("s_waitcnt", "s_barrier", "s_branch", "s_endpgm", "s_setprio", "s_sleep"):
                rd = sum((regs_of(o) for o in ops), [])
            else:
                wr = regs_of(ops[0]) if ops else []
                rd = sum((regs_of(o) for o in ops[1:]), [])

        vrd = [i for k, i in rd if k == "v"]
        vwr = [i for k, i in wr if k == "v"]
        srd = [i for k, i in rd if k == "s"]
        swr = [i for k, i in wr if k == "s"]

        if is_mfma:
            passes = 8 if "32x32x16" in op else 4
            cregs = [i for k, i in regs_of(ops[3])] if len(ops) > 3 else []
            ab = [i for k, i in regs_of(ops[1]) + regs_of(ops[2])]
            for r in ab:
                if r in self.mf:
                    t, p, f, s = self.mf[r]; req(t, 12 if p == 8 else 8)
                if r in self.vw:
                    t, k = self.vw[r]; req(t, 3 if k.startswith("dot") else 2)
            for r in cregs:
                if r in self.mf:
                    t, p, f, s = self.mf[r]
                    if not (p == passes and f == cregs[0] and s == len(cregs)):
                        req(t, 10 if p == 8 else 6)
                if r in self.vw:
                    t, k = self.vw[r]; req(t, 3 if k.startswith("dot") else 2)
            req(self.execw, 4)
        else:
            for r in vrd + vwr:
                if r in self.mf:
                    t, p, f, s = self.mf[r]; req(t, 12 if p == 8 else 8)
        if is_valu and not is_mfma:
            for r in vwr:
                if r in self.mc:
                    t, p = self.mc[r]; req(t, 7 if p == 8 else 3)
                if r in self.st:
                    req(self.st[r], 2)
            for r in vrd:
                if r in self.vw:
                    t, k = self.vw[r]
                    if is_perm or is_dpp:
                        req(t, 2)
                    if is_rl:
                        req(t, 1)
                    if k == "trans" and op not in TRANS:
                        req(t, 1)
                    if k == "opsel":
                        req(t, 1)
                    if k.startswith("dot"):
                        same = (k == "dot:" + op)
                        isC = same and ((len(ops) > 3 and r in [i for _, i in regs_of(ops[3])]) or (op.startswith("v_dot2c") and r in [i for _, i in regs_of(ops[0])]))
                        isAB = r in [i for o in ops[1:3] for _, i in regs_of(o)]
                        if not isC or isAB:
                            req(t, 3)
            for r in vwr:
                if r in self.vw:
                    t, k = self.vw[r]
                    if k.startswith("dot") and k != "dot:" + op:
                        req(t, 3)
            for r in srd:
                if r in self.sw:
                    req(self.sw[r], 4 if is_rl else 2)
            if is_dpp:
                req(self.execw, 5)
        if is_ds or is_vmem:
            for r in vrd:
                if r in self.vw and self.vw[r][1].startswith("dot"):
                    req(self.vw[r][0], 3)
                if r in self.vw and self.vw[r][1] == "trans":
                    req(self.vw[r][0], 1)
            for r in vwr:
                if r in self.st:
                    req(self.st[r], 1)
        if is_vmem:
            for r in srd:
                if r in self.sw:
                    req(self.sw[r], 5)
        if not (is_valu or is_ds or is_vmem):
            for r in srd:
                if r in self.sw:
                    req(self.sw[r], 1)

        if need > self.t:
            self._nop(need - self.t)
        self.lines.append("  " + line)
        t = self.t
        self.t += 1
        if is_mfma:
            d = [i for k, i in regs_of(ops[0])]
            for r in d:
                self.mf[r] = (t, passes, d[0], len(d)); self.vw.pop(r, None)
            for r in cregs:
                self.mc[r] = (t, passes)
        elif is_valu:
            kind = "valu"
            if op in TRANS: kind = "trans"
            elif is_dot: kind = "dot:" + op
            elif "sdwa" in op or ("op_sel:" in mods and not op.startswith("v_pk")): kind = "opsel"
            for r in vwr:
                self.vw[r] = (t, kind); self.mf.pop(r, None)
            for r in swr:
                self.sw[r] = t
            if op.startswith("v_cmpx"):
                self.execw = t
        else:
            for r in vwr:
                self.vw.pop(r, None); self.mf.pop(r, None)
            if 124 in swr:
                self.m0 = t
            for r in swr:
                self.sw.pop(r, None)
            if is_vmem and ("store_dwordx4" in op or "store_dwordx3" in op):
                for k, i in regs_of(ops[0]):
                    self.st[i] = t

    def text(self):
        return "\n".join(self.lines) + "\n"
```

```python
import sys, os
sys.path.insert(0, os.path.dirname(os.path.abspath(__file__)))
from asmb import Asm

NAME = "adaLN_cond__spectral_fnet__dense_activation_relu__prompt"
WS_N, WS_MODP, WS_MODF, WS_PQ, WS_X2, WS_H1 = 0, 0x200000, 0x210000, 0x400000, 0xC00000, 0x1000000
H1S = 2816
DPP = "row_mask:0xf bank_mask:0xf"

def srd(a, d, p, off, size):
    if off:
        a(f"s_add_u32 s{d}, s{p}, {hex(off)}")
        a(f"s_addc_u32 s{d+1}, s{p+1}, 0")
        a(f"s_and_b32 s{d+1}, s{d+1}, 0xffff")
    else:
        a(f"s_mov_b32 s{d}, s{p}")
        a(f"s_and_b32 s{d+1}, s{p+1}, 0xffff")
    a(f"s_mov_b32 s{d+2}, {hex(size)}")
    a(f"s_mov_b32 s{d+3}, 0x00020000")

def kstart(a, name):
    a.raw(f".globl {name}\n.p2align 8\n.type {name},@function\n{name}:")
    a.reset()

def wave_sum(a, regs, tmps):
    for m in ("quad_perm:[1,0,3,2]", "quad_perm:[2,3,0,1]", "row_half_mirror", "row_mirror"):
        for r in regs:
            a(f"v_add_f32_dpp v{r}, v{r}, v{r} {m} {DPP}")
    for sw in ("v_permlane16_swap_b32", "v_permlane32_swap_b32"):
        for r, t in zip(regs, tmps):
            a(f"v_mov_b32 v{t}, v{r}")
        for r, t in zip(regs, tmps):
            a(f"{sw} v{r}, v{t}")
        for r, t in zip(regs, tmps):
            a(f"v_add_f32 v{r}, v{r}, v{t}")

def rbf(a, r):
    a(f"v_cvt_pk_bf16_f32 v{r}, v{r}, v{r}")
    a(f"v_lshlrev_b32 v{r}, 16, v{r}")

def unpack(a, dst, src):
    a(f"v_lshlrev_b32 v{dst}, 16, v{src}")
    a(f"v_and_b32 v{dst+1}, 0xffff0000, v{src}")

def gen_k0(a, cfg):
    kstart(a, "k0_kernel")
    NG = 192
    a(f"s_cmp_ge_u32 s2, {NG+256}")
    a("s_cbranch_scc1 K0_end")
    a(f"s_cmp_lt_u32 s2, {NG}")
    a("s_cbranch_scc1 K0_gemv")
    a("s_load_dwordx2 s[4:5], s[0:1], 0")
    a("s_load_dwordx2 s[6:7], s[0:1], 96")
    a(f"s_sub_u32 s3, s2, {NG}")
    a("s_lshl_b32 s3, s3, 13")
    a("v_lshrrev_b32 v1, 6, v0")
    a("v_and_b32 v2, 63, v0")
    a("v_lshlrev_b32 v1, 11, v1")
    a("v_lshl_add_u32 v1, v2, 4, v1")
    a("s_waitcnt lgkmcnt(0)")
    srd(a, 8, 4, 0, 2048*1024)
    a("buffer_load_dwordx4 v[4:7], v1, s[8:11], s3 offen")
    a("buffer_load_dwordx4 v[8:11], v1, s[8:11], s3 offen offset:1024")
    srd(a, 12, 6, WS_N, 2048*1024)
    X = [16, 32]
    S = [48, 49]; T = [50, 51]; M = [52, 53]
    for r in range(2):
        a(f"s_waitcnt vmcnt({1-r})")
        for i in range(4):
            unpack(a, X[r]+2*i, 4+4*r+i)
        a(f"v_add_f32 v{S[r]}, v{X[r]}, v{X[r]+1}")
        for i in range(2, 8):
            a(f"v_add_f32 v{S[r]}, v{S[r]}, v{X[r]+i}")
    wave_sum(a, S, T)
    for r in range(2):
        a(f"v_mul_f32 v{M[r]}, 0x3b000000, v{S[r]}")
    for r in range(2):
        for i in range(8):
            a(f"v_sub_f32 v{X[r]+8+i}, v{X[r]+i}, v{M[r]}")
        a(f"v_mul_f32 v{S[r]}, v{X[r]+8}, v{X[r]+8}")
        for i in range(1, 8):
            a(f"v_fmac_f32 v{S[r]}, v{X[r]+8+i}, v{X[r]+8+i}")
    wave_sum(a, S, T)
    for r in range(2):
        a(f"v_mul_f32 v{S[r]}, 0x3b000000, v{S[r]}")
        rbf(a, S[r])
        rbf(a, M[r])
    for r in range(2):
        a(f"v_add_f32 v{S[r]}, 0x3727c5ac, v{S[r]}")
        rbf(a, S[r])
    for r in range(2):
        a(f"v_sqrt_f32 v{S[r]}, v{S[r]}")
    for r in range(2):
        rbf(a, S[r])
    for r in range(2):
        a(f"v_rcp_f32 v{S[r]}, v{S[r]}")
    for r in range(2):
        for i in range(8):
            a(f"v_sub_f32 v{X[r]+i}, v{X[r]+i}, v{M[r]}")
        for i in range(4):
            a(f"v_cvt_pk_bf16_f32 v{X[r]+8+i}, v{X[r]+2*i}, v{X[r]+2*i+1}")
        for i in range(4):
            unpack(a, X[r]+2*i, X[r]+8+i)
        for i in range(8):
            a(f"v_mul_f32 v{X[r]+i}, v{X[r]+i}, v{S[r]}")
        for i in range(4):
            a(f"v_cvt_pk_bf16_f32 v{4+4*r+i}, v{X[r]+2*i}, v{X[r]+2*i+1}")
        a(f"buffer_store_dwordx4 v[{4+4*r}:{7+4*r}], v1, s[12:15], s3 offen offset:{1024*r}")
    a("s_endpgm")
    a.raw("K0_gemv:")
    a.reset()
    a("s_load_dwordx4 s[4:7], s[0:1], 64")
    a("s_load_dwordx2 s[16:17], s[0:1], 96")
    a("s_lshr_b32 s18, s2, 2")
    a("s_and_b32 s19, s2, 3")
    a("v_lshrrev_b32 v1, 3, v0")
    a("v_and_b32 v2, 7, v0")
    a("s_lshl_b32 s20, s19, 7")
    a("v_add_u32 v1, s20, v1")
    a("v_lshlrev_b32 v3, 1, v1")
    a("v_mul_u32_u24 v1, 0x1800, v1")
    a("v_lshl_add_u32 v1, v2, 4, v1")
    a("s_lshl_b32 s21, s18, 7")
    a(f"s_add_u32 s22, s21, {32*6144}")
    a(f"s_add_u32 s23, s21, {64*6144}")
    a(f"s_add_u32 s24, s21, {96*6144}")
    a("s_waitcnt lgkmcnt(0)")
    srd(a, 8, 6, 0, 512*6144)
    srd(a, 12, 4, 0, 1024)
    for j in range(4):
        a(f"buffer_load_ushort v{4+j}, v3, s[12:15], 0 offen offset:{64*j}")
    for j in range(4):
        a(f"buffer_load_dwordx4 v[{8+4*j}:{11+4*j}], v1, s[8:11], s{21+j} offen")
    srd(a, 28, 16, WS_MODP, 4*3072*4)
    a("s_waitcnt vmcnt(4)")
    for j in range(4):
        a(f"v_lshlrev_b32 v{4+j}, 16, v{4+j}")
    for j in range(4):
        a(f"v_mul_f32 v{24+j}, 0xbfb8aa3b, v{4+j}")
    for j in range(4):
        a(f"v_exp_f32 v{24+j}, v{24+j}")
    for j in range(4):
        a(f"v_add_f32 v{24+j}, 1.0, v{24+j}")
    for j in range(4):
        a(f"v_rcp_f32 v{24+j}, v{24+j}")
    for j in range(4):
        a(f"v_mul_f32 v{4+j}, v{4+j}, v{24+j}")
    for j in range(4):
        rbf(a, 4+j)
    ACC = 32
    for j in range(4):
        a(f"s_waitcnt vmcnt({3-j})")
        for i in range(4):
            unpack(a, 24+2*i, 8+4*j+i)
        for i in range(8):
            if j == 0:
                a(f"v_mul_f32 v{ACC+i}, v{24+i}, v{4+j}")
            else:
                a(f"v_fmac_f32 v{ACC+i}, v{24+i}, v{4+j}")
    for i in range(4):
        a(f"v_permlane32_swap_b32 v{ACC+2*i}, v{ACC+2*i+1}")
    for i in range(4):
        a(f"v_add_f32 v{40+i}, v{ACC+2*i}, v{ACC+2*i+1}")
    for i in range(2):
        a(f"v_permlane16_swap_b32 v{40+2*i}, v{40+2*i+1}")
    for i in range(2):
        a(f"v_add_f32 v{44+i}, v{40+2*i}, v{40+2*i+1}")
    for i in range(2):
        a(f"v_add_f32_dpp v{44+i}, v{44+i}, v{44+i} row_ror:8 {DPP}")
    a("v_bfe_u32 v5, v0, 3, 1")
    a("v_bfe_u32 v6, v0, 4, 1")
    a("v_bfe_u32 v7, v0, 5, 1")
    a("v_cmp_eq_u32 vcc, 1, v5")
    a("v_lshlrev_b32 v8, 3, v2")
    a("v_lshl_add_u32 v8, v5, 2, v8")
    a("v_lshl_add_u32 v8, v6, 1, v8")
    a("v_add_u32 v8, v8, v7")
    a("v_cndmask_b32 v44, v44, v45, vcc")
    a("v_lshrrev_b32 v9, 6, v0")
    a("v_lshl_add_u32 v8, v9, 6, v8")
    a("v_lshlrev_b32 v8, 2, v8")
    a("ds_write_b32 v8, v44")
    a("v_readfirstlane_b32 s25, v9")
    a("s_waitcnt lgkmcnt(0)")
    a("s_barrier")
    a("s_cmp_lg_u32 s25, 0")
    a("s_cbranch_scc1 K0_end")
    a("v_lshlrev_b32 v1, 2, v0")
    for w in range(4):
        a(f"ds_read_b32 v{4+w}, v1 offset:{256*w}")
    a(f"s_mul_i32 s20, s19, {3072*4}")
    a("s_lshl_b32 s21, s18, 8")
    a("s_add_u32 s20, s20, s21")
    a("s_waitcnt lgkmcnt(0)")
    a("v_add_f32 v4, v4, v5")
    a("v_add_f32 v6, v6, v7")
    a("v_add_f32 v4, v4, v6")
    a("buffer_store_dword v4, v1, s[28:31], s20 offen")
    a.raw("K0_end:")
    a("s_endpgm")
    return dict(name="k0_kernel", grid=NG+256, block=256, lds=1024, vgpr=64)

def loader_loop(a, pfx, NST, NS, SLOT, ipw, issue, extra=None, pre_outstanding=0):
    TOT = NS * SLOT
    def adv():
        a(f"s_add_u32 s41, s41, {SLOT}")
        a(f"s_cmp_ge_u32 s41, {TOT}")
        a("s_cselect_b32 s41, 0, s41")
    a(f"s_waitcnt vmcnt({min(63, ipw*(NS-1))})")
    a("s_waitcnt lgkmcnt(0)")
    a("s_barrier")
    if extra: extra()
    nmain = NST - NS
    if nmain > 0:
        a(f"s_mov_b32 s42, {nmain}")
        a.flush_hazards()
        a.raw(f"{pfx}_lloop:")
        a(f"s_waitcnt vmcnt({ipw*(NS-2)}) lgkmcnt(0)")
        a("s_barrier")
        issue()
        adv()
        if extra: extra()
        a("s_sub_u32 s42, s42, 1")
        a("s_cmp_lg_u32 s42, 0")
        a.flush_hazards()
        a(f"s_cbranch_scc1 {pfx}_lloop")
    for i in range(nmain + 1, NST):
        a(f"s_waitcnt vmcnt({ipw*(NST-1-i)}) lgkmcnt(0)")
        a("s_barrier")
        if extra: extra()

def dma_issue(a, ipw, vbase, srdreg, soff):
    a("s_add_u32 s43, s40, s41")
    for j in range(ipw):
        a(f"s_add_u32 m0, s43, {j*1024}")
        a(f"buffer_load_dwordx4 v{vbase+j}, s[{srdreg}:{srdreg+3}], s{soff} offen lds")

def voff_tr(a, vdst, ipw, rs, first_rowgroup_sreg=None):
    a("v_lshrrev_b32 v2, 3, v1")
    a("v_and_b32 v3, 7, v1")
    a("v_bfe_u32 v4, v1, 4, 1")
    a("v_lshlrev_b32 v4, 2, v4")
    a("v_xor_b32 v3, v3, v4")
    a("v_lshlrev_b32 v3, 4, v3")
    a(f"v_mul_u32_u24 v2, {rs}, v2")
    a(f"v_add_u32 v{vdst}, v2, v3")
    for j in range(1, ipw):
        a(f"v_add_u32 v{vdst+j}, {8*j*rs}, v{vdst}")

def voff_kc(a, vdst, ipw, rs):
    a("v_lshrrev_b32 v2, 3, v1")
    a("v_and_b32 v3, 7, v1")
    a("v_lshrrev_b32 v4, 4, v1")
    a("v_xor_b32 v3, v3, v4")
    a("v_xor_b32 v4, 4, v3")
    a("v_lshlrev_b32 v3, 4, v3")
    a("v_lshlrev_b32 v4, 4, v4")
    a(f"v_mul_u32_u24 v2, {rs}, v2")
    a("v_add_u32 v3, v2, v3")
    a("v_add_u32 v4, v2, v4")
    for j in range(ipw):
        a(f"v_add_u32 v{vdst+j}, {8*j*rs}, v{3 + (j & 1)}")

def addr_kc(a, vdst, tmp):
    a(f"v_and_b32 v{tmp}, 31, v1")
    a(f"v_bfe_u32 v{tmp+1}, v1, 1, 3")
    a(f"v_lshrrev_b32 v{vdst}, 5, v1")
    a(f"v_xor_b32 v{vdst}, v{vdst}, v{tmp+1}")
    a(f"v_lshlrev_b32 v{vdst}, 4, v{vdst}")
    a(f"v_lshl_add_u32 v{vdst}, v{tmp}, 7, v{vdst}")
    for ks in range(1, 4):
        a(f"v_xor_b32 v{vdst+ks}, {ks*32}, v{vdst}")

def addr_tr(a, vdst, tmp):
    a(f"v_lshrrev_b32 v{tmp}, 5, v1")
    a(f"v_bfe_u32 v{tmp+1}, v1, 2, 2")
    a(f"v_lshl_add_u32 v{tmp}, v{tmp}, 3, v{tmp+1}")
    a(f"v_lshlrev_b32 v{vdst}, 7, v{tmp}")
    a(f"v_bfe_u32 v{tmp}, v1, 4, 1")
    a(f"v_lshl_add_u32 v{vdst}, v{tmp}, 5, v{vdst}")
    a(f"v_and_b32 v{tmp}, 3, v1")
    a(f"v_lshl_add_u32 v{vdst}, v{tmp}, 3, v{vdst}")
    a(f"v_bfe_u32 v{tmp}, v1, 3, 1")
    a(f"v_lshl_add_u32 v{vdst}, v{tmp}, 6, v{vdst}")
    a(f"v_xor_b32 v{vdst+1}, 64, v{vdst}")

def mfma(a, acc, A, B):
    a(f"v_mfma_f32_32x32x16_bf16 v[{acc}:{acc+15}], v[{A}:{A+3}], v[{B}:{B+3}], v[{acc}:{acc+15}]")

def rd_tr(a, dst, vaddr, ks, extra=0):
    a(f"ds_read_b64_tr_b16 v[{dst}:{dst+1}], v{vaddr} offset:{ks*2048+extra}")
    a(f"ds_read_b64_tr_b16 v[{dst+2}:{dst+3}], v{vaddr} offset:{ks*2048+512+extra}")

def rd_kc(a, dst, vaddr, off=0):
    a(f"ds_read_b128 v[{dst}:{dst+3}], v{vaddr} offset:{off}")

def wave_id(a):
    a("v_lshrrev_b32 v2, 6, v0")
    a("v_and_b32 v1, 63, v0")
    a("v_readfirstlane_b32 s3, v2")

def pack_store(a, src, tmp, vaddr, srdreg, soff, off):
    for i in range(8):
        a(f"v_cvt_pk_bf16_f32 v{tmp+i}, v{src+2*i}, v{src+2*i+1}")
    swap_store(a, tmp, vaddr, srdreg, soff, off)

def swap_store(a, tmp, vaddr, srdreg, soff, off):
    for p in range(2):
        a(f"v_permlane32_swap_b32 v{tmp+4*p}, v{tmp+4*p+2}")
        a(f"v_permlane32_swap_b32 v{tmp+4*p+1}, v{tmp+4*p+3}")
    for p in range(2):
        a(f"buffer_store_dwordx4 v[{tmp+4*p}:{tmp+4*p+3}], v{vaddr}, s[{srdreg}:{srdreg+3}], {soff} offen offset:{off+32*p}")

def gen_k1(a, cfg):
    kstart(a, "k1_kernel")
    NST, NS, SLOT = 16, 4, 32768
    XL = NS * SLOT
    a("s_cmp_ge_u32 s2, 256")
    a("s_cbranch_scc1 K1_end")
    a("s_load_dwordx4 s[4:7], s[0:1], 8")
    a("s_load_dwordx2 s[16:17], s[0:1], 96")
    wave_id(a)
    a("s_and_b32 s18, s2, 7")
    a("s_lshr_b32 s19, s2, 3")
    a("s_lshr_b32 s20, s18, 2")
    a("s_and_b32 s21, s18, 3")
    a("s_lshl_b32 s21, s21, 3")
    a("s_lshr_b32 s22, s19, 2")
    a("s_add_u32 s21, s21, s22")
    a("s_and_b32 s22, s19, 3")
    a("s_cmp_lt_u32 s3, 4")
    a("s_cbranch_scc1 K1_cons")
    a("s_sub_u32 s23, s3, 4")
    a("s_lshl_b32 s40, s23, 13")
    a("s_mov_b32 s41, 0")
    a("s_cmp_lt_u32 s23, 2")
    a("s_cbranch_scc1 K1_ldA")
    voff_kc(a, 8, 8, 4096)
    a("s_and_b32 s24, s21, 15")
    a("s_lshl_b32 s24, s24, 7")
    a("s_sub_u32 s25, s23, 2")
    a("s_lshl_b32 s25, s25, 6")
    a("s_add_u32 s24, s24, s25")
    a("s_lshl_b32 s24, s24, 12")
    a("s_lshl_b32 s25, s20, 11")
    a("s_add_u32 s44, s24, s25")
    a("s_mov_b32 s45, 128")
    a("s_cmp_lt_u32 s21, 16")
    a("s_waitcnt lgkmcnt(0)")
    a("s_cselect_b32 s4, s4, s6")
    a("s_cselect_b32 s5, s5, s7")
    srd(a, 8, 4, 0, 2048*4096)
    a("s_branch K1_ldgo")
    a.raw("K1_ldA:")
    voff_tr(a, 8, 8, 1024)
    a("s_lshl_b32 s24, s20, 20")
    a("s_lshl_b32 s25, s22, 8")
    a("s_add_u32 s24, s24, s25")
    a("s_lshl_b32 s25, s23, 7")
    a("s_add_u32 s44, s24, s25")
    a("s_mov_b32 s45, 65536")
    a("s_waitcnt lgkmcnt(0)")
    srd(a, 8, 16, WS_N, 2048*1024)
    a.raw("K1_ldgo:")
    a.reset()
    def issue():
        dma_issue(a, 8, 8, 8, 44)
        a("s_add_u32 s44, s44, s45")
    for s in range(NS):
        issue()
        a(f"s_mov_b32 s41, {((s+1) % NS)*SLOT}")
    addr_kc(a, 20, 2)
    a("s_lshl_b32 s24, s23, 12")
    a("s_add_u32 s46, s24, 16384")
    a("v_mov_b32 v28, 0x3f803f80")
    a("v_mov_b32 v30, 0")
    a("v_mov_b32 v31, 0")
    def extra():
        for k in range(4):
            a(f"v_add_u32 v{24+k}, s46, v{20+k}")
        for k in range(4):
            rd_kc(a, 32+4*k, 24+k)
        a(f"s_add_u32 s46, s46, {SLOT}")
        a(f"s_cmp_ge_u32 s46, {NS*SLOT}")
        a(f"s_cselect_b32 s47, {NS*SLOT}, 0")
        a("s_sub_u32 s46, s46, s47")
        for k in range(4):
            a(f"s_waitcnt lgkmcnt({3-k})")
            for i in range(4):
                a(f"v_dot2_f32_bf16 v{30+(i&1)}, v{32+4*k+i}, v28, v{30+(i&1)}")
    loader_loop(a, "K1", NST, NS, SLOT, 8, issue, extra)
    a("v_add_f32 v30, v30, v31")
    a("v_mov_b32 v31, v30")
    a("v_permlane32_swap_b32 v30, v31")
    a("v_add_f32 v30, v30, v31")
    a("v_and_b32 v2, 31, v1")
    a("s_lshl_b32 s24, s23, 7")
    a(f"s_add_u32 s24, s24, {XL}")
    a("v_lshl_add_u32 v2, v2, 2, s24")
    a("ds_write_b32 v2, v30")
    a("s_waitcnt lgkmcnt(0)")
    a("s_barrier")
    a("s_endpgm")
    a.raw("K1_cons:")
    a.reset()
    ACC, FR, MOD = 64, 128, 160
    a("s_waitcnt lgkmcnt(0)")
    srd(a, 8, 16, WS_MODP, 4*3072*4)
    a("s_cmp_eq_u32 s3, 0")
    a("s_cbranch_scc0 K1_c1")
    a("s_lshl_b32 s24, s22, 9")
    a("v_lshl_add_u32 v2, v1, 3, s24")
    for kq in range(4):
        a(f"s_mov_b32 s{24+kq}, {kq*12288}")
    for kq in range(4):
        a(f"buffer_load_dwordx2 v[{4+4*kq}:{5+4*kq}], v2, s[8:11], s{24+kq} offen")
        a(f"buffer_load_dwordx2 v[{6+4*kq}:{7+4*kq}], v2, s[8:11], s{24+kq} offen offset:2048")
    a("s_cmp_lt_u32 s21, 16")
    a("s_cselect_b32 s28, 1.0, -1.0")
    a("s_waitcnt vmcnt(0)")
    for i in range(4):
        a(f"v_add_f32 v{4+i}, v{4+i}, v{8+i}")
        a(f"v_add_f32 v{12+i}, v{12+i}, v{16+i}")
    for i in range(4):
        a(f"v_add_f32 v{4+i}, v{4+i}, v{12+i}")
    for i in range(4):
        rbf(a, 4+i)
    for i in range(2):
        a(f"v_add_f32 v{6+i}, 1.0, v{6+i}")
    for i in range(2):
        rbf(a, 6+i)
    for i in range(4):
        a(f"v_mul_f32 v{4+i}, s28, v{4+i}")
    a("v_lshlrev_b32 v2, 3, v1")
    a(f"v_add_u32 v2, {XL}, v2")
    a("ds_write_b64 v2, v[6:7] offset:512")
    a("ds_write_b64 v2, v[4:5] offset:1024")
    a("s_branch K1_c2")
    a.raw("K1_c1:")
    a.reset()
    a("s_cmp_eq_u32 s3, 1")
    a("s_cbranch_scc0 K1_c2")
    a("s_cmp_lt_u32 s2, 6")
    a("s_cbranch_scc0 K1_c2")
    a("s_lshl_b32 s24, s2, 11")
    a("v_lshl_add_u32 v2, v1, 5, s24")
    for kq in range(4):
        a(f"s_mov_b32 s{24+kq}, {kq*12288}")
    for kq in range(4):
        a(f"buffer_load_dwordx4 v[{4+8*kq}:{7+8*kq}], v2, s[8:11], s{24+kq} offen")
        a(f"buffer_load_dwordx4 v[{8+8*kq}:{11+8*kq}], v2, s[8:11], s{24+kq} offen offset:16")
    srd(a, 12, 16, WS_MODF, 3072*4)
    a("s_cmp_eq_u32 s2, 1")
    a("s_cselect_b32 s28, 1.0, 0")
    a("s_cmp_eq_u32 s2, 4")
    a("s_cselect_b32 s28, 1.0, s28")
    a("s_waitcnt vmcnt(0)")
    for i in range(8):
        a(f"v_add_f32 v{4+i}, v{4+i}, v{12+i}")
        a(f"v_add_f32 v{20+i}, v{20+i}, v{28+i}")
    for i in range(8):
        a(f"v_add_f32 v{4+i}, v{4+i}, v{20+i}")
    for i in range(8):
        rbf(a, 4+i)
    for i in range(8):
        a(f"v_add_f32 v{4+i}, s28, v{4+i}")
    for i in range(8):
        rbf(a, 4+i)
    a("buffer_store_dwordx4 v[4:7], v2, s[12:15], 0 offen")
    a("buffer_store_dwordx4 v[8:11], v2, s[12:15], 0 offen offset:16")
    a.flush_hazards()
    a.raw("K1_c2:")
    a.reset()
    a("s_and_b32 s24, s3, 1")
    a("s_lshr_b32 s25, s3, 1")
    addr_tr(a, 40, 2)
    addr_kc(a, 42, 2)
    a("s_lshl_b32 s26, s24, 13")
    a("s_lshl_b32 s27, s25, 13")
    a("s_add_u32 s27, s27, 16384")
    for i in range(2):
        a(f"v_add_u32 v{40+i}, s26, v{40+i}")
    for i in range(4):
        a(f"v_add_u32 v{42+i}, s27, v{42+i}")
    for i in range(64):
        a(f"v_mov_b32 v{ACC+i}, 0")
    for i in range(16):
        a(f"v_mov_b32 v{FR+16+i}, 0")
    a("s_mov_b32 s41, 0")
    a(f"s_mov_b32 s42, {NST}")
    def fr(s): return FR + 16*s
    def group(rset, ks, cset, first=False):
        R, C = fr(rset), fr(cset)
        if not first: a("s_waitcnt lgkmcnt(3)")
        mfma(a, ACC+0, C+0, C+8)
        if ks is not None: rd_tr(a, R+0, 48, ks)
        if not first: a("s_waitcnt lgkmcnt(4)" if ks is not None else "s_waitcnt lgkmcnt(2)")
        mfma(a, ACC+16, C+0, C+12)
        if ks is not None:
            rd_kc(a, R+8, 50+ks)
            rd_kc(a, R+12, 50+ks, 4096)
        if not first: a("s_waitcnt lgkmcnt(4)" if ks is not None else "s_waitcnt lgkmcnt(0)")
        mfma(a, ACC+48, C+4, C+12)
        if ks is not None: rd_tr(a, R+4, 49, ks)
        mfma(a, ACC+32, C+4, C+8)
    a.flush_hazards()
    a.raw("K1_cloop:")
    for i in range(6):
        a(f"v_add_u32 v{48+i}, s41, v{40+i}")
    a(f"s_add_u32 s41, s41, {SLOT}")
    a(f"s_cmp_ge_u32 s41, {NS*SLOT}")
    a("s_cselect_b32 s41, 0, s41")
    a("s_waitcnt lgkmcnt(0)")
    a("s_barrier")
    group(0, 0, 1, first=True)
    group(1, 1, 0)
    group(0, 2, 1)
    group(1, 3, 0)
    a("s_sub_u32 s42, s42, 1")
    a("s_cmp_lg_u32 s42, 0")
    a("s_cbranch_scc1 K1_cloop")
    a("v_lshrrev_b32 v2, 5, v1")
    a("v_lshlrev_b32 v2, 4, v2")
    a("s_lshl_b32 s26, s24, 8")
    a(f"s_add_u32 s26, s26, {XL}")
    a("v_add_u32 v2, s26, v2")
    a("s_waitcnt lgkmcnt(0)")
    group(0, None, 1, first=True)
    for mi in range(2):
        for q in range(4):
            rd_kc(a, MOD + mi*16 + 4*q, 2, 512 + mi*128 + q*32)
    a("s_waitcnt lgkmcnt(4)")
    for mi in range(2):
        for q in range(4):
            rd_kc(a, MOD + 32 + mi*16 + 4*q, 2, 1024 + mi*128 + q*32)
    a("s_barrier")
    a("v_and_b32 v3, 31, v1")
    a("s_lshl_b32 s26, s25, 8")
    a(f"s_add_u32 s26, s26, {XL}")
    a("v_lshl_add_u32 v4, v3, 2, s26")
    a("ds_read_b32 v6, v4")
    a("ds_read_b32 v7, v4 offset:128")
    srd(a, 12, 16, WS_PQ, 2*2048*2048)
    a("s_and_b32 s26, s21, 15")
    a("s_lshl_b32 s26, s26, 7")
    a("s_lshl_b32 s27, s25, 6")
    a("s_add_u32 s26, s26, s27")
    a("s_lshl_b32 s26, s26, 11")
    a("s_lshr_b32 s27, s21, 4")
    a("s_lshl_b32 s27, s27, 10")
    a("s_add_u32 s26, s26, s27")
    a("s_lshl_b32 s27, s22, 8")
    a("s_add_u32 s26, s26, s27")
    a("s_lshl_b32 s27, s24, 7")
    a("s_add_u32 s26, s26, s27")
    a("s_lshl_b32 s27, s20, 22")
    a("s_add_u32 s26, s26, s27")
    a(f"s_add_u32 s27, s26, {32*2048}")
    a("v_lshrrev_b32 v2, 5, v1")
    a("v_lshlrev_b32 v2, 4, v2")
    a("v_lshl_add_u32 v2, v3, 11, v2")
    a("s_waitcnt lgkmcnt(0)")
    for ni in range(2):
        for mi in range(2):
            acc = ACC + (mi*2+ni)*16
            for i in range(16):
                a(f"v_mul_f32 v{acc+i}, v{acc+i}, v{MOD+mi*16+i}")
            for i in range(16):
                a(f"v_fmac_f32 v{acc+i}, v{6+ni}, v{MOD+32+mi*16+i}")
            pack_store(a, acc, 8 + 8*(mi+2*ni), 2, 12, f"s{26+ni}", mi*64)
    a.raw("K1_end:")
    a("s_endpgm")
    return dict(name="k1_kernel", grid=256, block=512, lds=XL+1536, vgpr=232)

def tile_map(a):
    a("s_and_b32 s18, s2, 7")
    a("s_lshr_b32 s19, s2, 3")
    a("s_lshl_b32 s21, s18, 2")
    a("s_lshr_b32 s22, s19, 3")
    a("s_add_u32 s21, s21, s22")
    a("s_and_b32 s22, s19, 7")

def resid_epilogue(a, ACC, XR, G, tmp, vaddr, srdreg, soff):
    for i in range(8):
        a(f"v_cvt_pk_bf16_f32 v{tmp+i}, v{ACC+2*i}, v{ACC+2*i+1}")
    for i in range(8):
        unpack(a, ACC+2*i, tmp+i)
    for i in range(16):
        a(f"v_mul_f32 v{ACC+i}, v{ACC+i}, v{G+i}")
    for i in range(8):
        a(f"v_cvt_pk_bf16_f32 v{tmp+i}, v{ACC+2*i}, v{ACC+2*i+1}")
    for i in range(8):
        unpack(a, ACC+2*i, tmp+i)
    for i in range(8):
        unpack(a, G+2*i, XR+i)
    for i in range(16):
        a(f"v_add_f32 v{ACC+i}, v{ACC+i}, v{G+i}")
    pack_store(a, ACC, tmp, vaddr, srdreg, soff, 0)

def resid_prologue(a, xs, gs, gidx, XR, G):
    a("s_lshl_b32 s26, s21, 6")
    a("s_lshl_b32 s27, s25, 5")
    a("s_add_u32 s26, s26, s27")
    a("s_lshl_b32 s26, s26, 10")
    a("s_lshl_b32 s27, s22, 7")
    a("s_add_u32 s26, s26, s27")
    a("s_lshl_b32 s27, s24, 6")
    a("s_add_u32 s26, s26, s27")
    a("v_and_b32 v3, 31, v1")
    a("v_lshrrev_b32 v2, 5, v1")
    a("v_lshlrev_b32 v4, 3, v2")
    a("v_lshl_add_u32 v4, v3, 10, v4")
    a("v_lshlrev_b32 v5, 4, v2")
    a("v_lshl_add_u32 v5, v3, 10, v5")
    for q in range(4):
        a(f"buffer_load_dwordx2 v[{XR+2*q}:{XR+2*q+1}], v4, s[{xs}:{xs+3}], s26 offen offset:{16*q}")
    a("s_lshl_b32 s27, s22, 8")
    a("s_lshl_b32 s28, s24, 7")
    a("s_add_u32 s27, s27, s28")
    a(f"s_add_u32 s27, s27, {gidx*2048}")
    a("v_lshlrev_b32 v4, 4, v2")
    for q in range(4):
        a(f"buffer_load_dwordx4 v[{G+4*q}:{G+4*q+3}], v4, s[{gs}:{gs+3}], s27 offen offset:{32*q}")

def gen_k2(a, cfg):
    kstart(a, "k2_kernel")
    NST, NS, SLOT = 16, 6, 24576
    a("s_cmp_ge_u32 s2, 256")
    a("s_cbranch_scc1 K2_end")
    a("s_load_dwordx4 s[4:7], s[0:1], 24")
    a("s_load_dwordx2 s[16:17], s[0:1], 96")
    a("s_load_dwordx2 s[30:31], s[0:1], 0")
    wave_id(a)
    tile_map(a)
    a("s_cmp_lt_u32 s3, 4")
    a("s_cbranch_scc1 K2_cons")
    a("s_cmp_eq_u32 s3, 7")
    a("s_cbranch_scc1 K2_end")
    a("s_sub_u32 s23, s3, 4")
    a("s_lshl_b32 s40, s23, 13")
    a("s_mov_b32 s41, 0")
    a("s_mov_b32 s48, 0")
    a("s_cmp_eq_u32 s23, 0")
    a("s_cbranch_scc1 K2_ldA")
    voff_kc(a, 8, 8, 2048)
    a("s_lshl_b32 s44, s21, 17")
    a("s_sub_u32 s24, s23, 1")
    a("s_lshl_b32 s24, s24, 22")
    a("s_add_u32 s44, s44, s24")
    a("s_add_u32 s47, s44, 1024")
    a("s_waitcnt lgkmcnt(0)")
    srd(a, 8, 16, WS_PQ, 2*2048*2048)
    a("s_mov_b32 s45, s8")
    a("s_mov_b32 s46, s9")
    a("s_branch K2_ldgo")
    a.raw("K2_ldA:")
    voff_kc(a, 8, 8, 1024)
    a("s_lshl_b32 s44, s22, 16")
    a("s_mov_b32 s47, s44")
    a("s_waitcnt lgkmcnt(0)")
    srd(a, 8, 4, 0, 512*1024)
    a("s_mov_b32 s45, s6")
    a("s_and_b32 s46, s7, 0xffff")
    a.raw("K2_ldgo:")
    a.reset()
    def issue():
        a("s_cmp_eq_u32 s48, 8")
        a("s_cselect_b32 s8, s45, s8")
        a("s_cselect_b32 s9, s46, s9")
        a("s_cselect_b32 s44, s47, s44")
        dma_issue(a, 8, 8, 8, 44)
        a("s_add_u32 s44, s44, 128")
        a("s_add_u32 s48, s48, 1")
    for s in range(NS):
        dma_issue(a, 8, 8, 8, 44)
        a("s_add_u32 s44, s44, 128")
        a(f"s_mov_b32 s41, {((s+1) % NS)*SLOT}")
    a(f"s_mov_b32 s48, {NS}")
    loader_loop(a, "K2", NST, NS, SLOT, 8, issue)
    a("s_endpgm")
    a.raw("K2_cons:")
    a.reset()
    ACC, XR, G, FR = 16, 32, 40, 64
    a("s_and_b32 s24, s3, 1")
    a("s_lshr_b32 s25, s3, 1")
    a("s_waitcnt lgkmcnt(0)")
    srd(a, 8, 30, 0, 2048*1024)
    srd(a, 12, 16, WS_MODF, 3072*4)
    resid_prologue(a, 8, 12, 2, XR, G)
    srd(a, 12, 16, WS_X2, 2048*1024)
    addr_kc(a, 56, 2)
    a("s_lshl_b32 s44, s24, 12")
    a("s_lshl_b32 s45, s25, 12")
    a("s_add_u32 s45, s45, 8192")
    for i in range(16):
        a(f"v_mov_b32 v{ACC+i}, 0")
    for i in range(48):
        a(f"v_mov_b32 v{FR+48+i}, 0")
    a("s_mov_b32 s41, 0")
    a(f"s_mov_b32 s42, {NST//2}")
    def stage(rset, cset, last=False):
        R, C = FR + 48*rset, FR + 48*cset
        if not last:
            a("s_add_u32 s46, s41, s44")
            a("s_add_u32 s47, s41, s45")
            for k in range(4):
                a(f"v_add_u32 v{8+k}, s46, v{56+k}")
                a(f"v_add_u32 v{12+k}, s47, v{56+k}")
            a(f"s_add_u32 s41, s41, {SLOT}")
            a(f"s_cmp_ge_u32 s41, {NS*SLOT}")
            a("s_cselect_b32 s41, 0, s41")
        a("s_waitcnt lgkmcnt(0)")
        if not last:
            a("s_barrier")
        for k in range(4):
            if not last:
                rd_kc(a, R+12*k, 8+k)
                rd_kc(a, R+12*k+4, 12+k)
            mfma(a, ACC, C+12*k, C+12*k+4)
            if not last:
                rd_kc(a, R+12*k+8, 12+k, 8192)
            mfma(a, ACC, C+12*k, C+12*k+8)
    a.flush_hazards()
    a.raw("K2_cloop:")
    stage(0, 1)
    stage(1, 0)
    a("s_sub_u32 s42, s42, 1")
    a("s_cmp_lg_u32 s42, 0")
    a("s_cbranch_scc1 K2_cloop")
    stage(0, 1, last=True)
    a("s_waitcnt vmcnt(0)")
    resid_epilogue(a, ACC, XR, G, 8, 5, 12, "s26")
    a.raw("K2_end:")
    a("s_endpgm")
    return dict(name="k2_kernel", grid=256, block=512, lds=NS*SLOT, vgpr=160)

def gen_k3(a, cfg):
    kstart(a, "k3_kernel")
    NST, NS, SLOT = 8, 4, 24576
    BRES = NS * SLOT
    a("s_cmp_ge_u32 s2, 256")
    a("s_cbranch_scc1 K3_end")
    a("s_load_dwordx2 s[4:5], s[0:1], 48")
    a("s_load_dwordx2 s[16:17], s[0:1], 96")
    wave_id(a)
    tile_map(a)
    a("s_lshl_b32 s26, s21, 6")
    a("s_lshl_b32 s27, s3, 3")
    a("s_add_u32 s26, s26, s27")
    a("s_lshl_b32 s26, s26, 10")
    a("s_add_u32 s27, s26, 4096")
    a("v_lshlrev_b32 v5, 4, v1")
    a("v_lshlrev_b32 v6, 5, v1")
    a(f"s_mul_i32 s29, s22, 192")
    a("s_min_u32 s29, s29, 1184")
    a("s_waitcnt lgkmcnt(0)")
    srd(a, 12, 16, WS_X2, 2048*1024)
    XP, CB, SB = 64, 96, 104
    for r in range(8):
        a(f"buffer_load_dwordx4 v[{XP+4*r}:{XP+4*r+3}], v5, s[12:15], s{26+r//4} offen offset:{(r%4)*1024}")
    srd(a, 12, 16, WS_MODF, 3072*4)
    a(f"s_mov_b32 s28, {3*2048}")
    a(f"buffer_load_dwordx4 v[{SB}:{SB+3}], v6, s[12:15], s28 offen")
    a(f"buffer_load_dwordx4 v[{SB+4}:{SB+7}], v6, s[12:15], s28 offen offset:16")
    a(f"buffer_load_dwordx4 v[{CB}:{CB+3}], v6, s[12:15], s28 offen offset:2048")
    a(f"buffer_load_dwordx4 v[{CB+4}:{CB+7}], v6, s[12:15], s28 offen offset:2064")
    a("s_cmp_lt_u32 s3, 4")
    a("s_cbranch_scc1 K3_ln0")
    a("s_sub_u32 s23, s3, 4")
    a(f"s_mul_i32 s40, s23, 6144")
    a("s_mov_b32 s41, 0")
    voff_tr(a, 8, 1, 2752)
    a("v_mov_b32 v7, v8")
    a("s_mul_i32 s24, s23, 6")
    for j in range(6):
        a(f"s_add_u32 s25, s24, {j}")
        a("s_lshr_b32 s30, s25, 3")
        a("s_lshl_b32 s30, s30, 7")
        a("s_and_b32 s25, s25, 7")
        a(f"s_mul_i32 s25, s25, {8*2752}")
        a("s_add_u32 s25, s25, s30")
        a(f"v_add_u32 v{8+j}, s25, v7")
    a("s_lshl_b32 s44, s29, 1")
    srd(a, 8, 4, 0, 512*2752)
    def issue():
        dma_issue(a, 6, 8, 8, 44)
        a(f"s_add_u32 s44, s44, {64*2752}")
    for s in range(NS):
        issue()
        a(f"s_mov_b32 s41, {((s+1) % NS)*SLOT}")
    a(f"s_waitcnt vmcnt({NS*6})")
    a("s_branch K3_ln1")
    a.raw("K3_ln0:")
    a("s_waitcnt vmcnt(0)")
    a.raw("K3_ln1:")
    a.reset()
    ST = 16
    a("v_mov_b32 v4, 0x3f803f80")
    for r in range(8):
        for i in range(4):
            x = XP + 4*r + i
            c0 = "0" if i == 0 else f"v{ST+2*r}"
            c1 = "0" if i == 0 else f"v{ST+2*r+1}"
            a(f"v_dot2_f32_bf16 v{ST+2*r}, v{x}, v4, {c0}")
            a(f"v_dot2_f32_bf16 v{ST+2*r+1}, v{x}, v{x}, {c1}")
    for q in range(2):
        for r in range(4):
            a(f"v_permlane32_swap_b32 v{ST+2*r+q}, v{ST+2*(r+4)+q}")
    for q in range(2):
        for r in range(4):
            a(f"v_add_f32 v{ST+2*r+q}, v{ST+2*r+q}, v{ST+2*(r+4)+q}")
    for q in range(2):
        for r in range(2):
            a(f"v_permlane16_swap_b32 v{ST+2*r+q}, v{ST+2*(r+2)+q}")
    for q in range(2):
        for r in range(2):
            a(f"v_add_f32 v{ST+2*r+q}, v{ST+2*r+q}, v{ST+2*(r+2)+q}")
    for m in ("quad_perm:[1,0,3,2]", "quad_perm:[2,3,0,1]", "row_half_mirror", "row_mirror"):
        for r in range(ST, ST+4):
            a(f"v_add_f32_dpp v{r}, v{r}, v{r} {m} {DPP}")
    for r in range(2):
        m, v = ST+2*r, ST+2*r+1
        a(f"v_mul_f32 v{m}, 0x3b000000, v{m}")
        a(f"v_mul_f32 v{v}, 0x3b000000, v{v}")
    for r in range(2):
        m, v = ST+2*r, ST+2*r+1
        a(f"v_fma_f32 v{v}, -v{m}, v{m}, v{v}")
        a(f"v_max_f32 v{v}, 0, v{v}")
    for r in range(2):
        rbf(a, ST+2*r); rbf(a, ST+2*r+1)
    for r in range(2):
        a(f"v_add_f32 v{ST+2*r+1}, 0x3727c5ac, v{ST+2*r+1}")
    for r in range(2):
        rbf(a, ST+2*r+1)
    for r in range(2):
        a(f"v_sqrt_f32 v{ST+2*r+1}, v{ST+2*r+1}")
    for r in range(2):
        rbf(a, ST+2*r+1)
    for r in range(2):
        a(f"v_rcp_f32 v{ST+2*r+1}, v{ST+2*r+1}")
    for r in range(2):
        a(f"v_mul_f32 v{ST+2*r}, -v{ST+2*r}, v{ST+2*r+1}")
    for row in range(8):
        r, lane = row & 1, ((row >> 1) & 1) * 16 + (row >> 2) * 32
        a(f"v_readlane_b32 s{64+2*row}, v{ST+2*r+1}, {lane}")
        a(f"v_readlane_b32 s{65+2*row}, v{ST+2*r}, {lane}")
    a("v_lshrrev_b32 v2, 3, v1")
    a("v_and_b32 v3, 7, v1")
    a("s_and_b32 s24, s3, 1")
    a("s_lshl_b32 s24, s24, 2")
    a("v_xor_b32 v3, s24, v3")
    a("v_lshlrev_b32 v3, 4, v3")
    a("v_lshl_add_u32 v2, v2, 13, v3")
    a("s_lshl_b32 s24, s3, 10")
    a(f"s_add_u32 s24, s24, {BRES}")
    a("v_add_u32 v2, s24, v2")
    for h in range(1, 4):
        a(f"v_xor_b32 v{2+h}, {16*h}, v2")
    for row in range(8):
        W = 32 + (row & 1) * 8
        sp = f"s[{64+2*row}:{65+2*row}]"
        for i in range(4):
            unpack(a, W+2*i, XP+4*row+i)
        for i in range(4):
            a(f"v_pk_fma_f32 v[{W+2*i}:{W+2*i+1}], v[{W+2*i}:{W+2*i+1}], {sp}, {sp} op_sel:[0,0,1] op_sel_hi:[1,0,1]")
        for i in range(4):
            a(f"v_pk_fma_f32 v[{W+2*i}:{W+2*i+1}], v[{W+2*i}:{W+2*i+1}], v[{CB+2*i}:{CB+2*i+1}], v[{SB+2*i}:{SB+2*i+1}]")
        for i in range(4):
            a(f"v_cvt_pk_bf16_f32 v{XP+4*row+i}, v{W+2*i}, v{W+2*i+1}")
        a(f"ds_write_b128 v{2+row//2}, v[{XP+4*row}:{XP+4*row+3}] offset:{row*128}")
    a("s_cmp_lt_u32 s3, 4")
    a("s_cbranch_scc1 K3_cons")
    loader_loop(a, "K3", NST, NS, SLOT, 6, issue)
    a("s_endpgm")
    a.raw("K3_cons:")
    a.reset()
    ACC, FR = 64, 112
    a("s_and_b32 s24, s3, 1")
    a("s_lshr_b32 s25, s3, 1")
    addr_tr(a, 40, 2)
    addr_kc(a, 52, 2)
    a("s_cmp_eq_u32 s24, 0")
    a("s_cselect_b32 s26, 0, 64")
    a("s_cselect_b32 s27, 0, 8192")
    a("s_cselect_b32 s28, 0, 16384")
    a("s_add_u32 s30, s27, 8192")
    a("v_xor_b32 v42, s26, v40")
    a("v_xor_b32 v43, s26, v41")
    a("v_add_u32 v44, s27, v42")
    a("v_add_u32 v45, s28, v43")
    a("v_add_u32 v46, s30, v42")
    a("s_lshl_b32 s26, s25, 12")
    a(f"s_add_u32 s26, s26, {BRES-8192}")
    for k in range(4):
        a(f"v_add_u32 v{52+k}, s26, v{52+k}")
    for i in range(48):
        a(f"v_mov_b32 v{ACC+i}, 0")
    for i in range(16):
        a(f"v_mov_b32 v{FR+16+i}, 0")
    a("s_mov_b32 s41, 0")
    a(f"s_mov_b32 s42, {NST}")
    def group(rset, ks, cset, first=False):
        R, C = FR+16*rset, FR+16*cset
        rdn = ks is not None
        if not first: a("s_waitcnt lgkmcnt(4)")
        mfma(a, ACC, C, C+12)
        if rdn:
            rd_kc(a, R+12, 52+ks)
            rd_tr(a, R, 48, ks)
        if not first: a("s_waitcnt lgkmcnt(5)" if rdn else "s_waitcnt lgkmcnt(2)")
        mfma(a, ACC+16, C+4, C+12)
        if rdn: rd_tr(a, R+4, 49, ks)
        if not first: a("s_waitcnt lgkmcnt(5)" if rdn else "s_waitcnt lgkmcnt(0)")
        mfma(a, ACC+32, C+8, C+12)
        if rdn: rd_tr(a, R+8, 50, ks)
    a.flush_hazards()
    a.raw("K3_cloop:")
    for i in range(3):
        a(f"v_add_u32 v{48+i}, s41, v{44+i}")
    for k in range(4):
        a(f"v_add_u32 v{52+k}, 8192, v{52+k}")
    a(f"s_add_u32 s41, s41, {SLOT}")
    a(f"s_cmp_ge_u32 s41, {NS*SLOT}")
    a("s_cselect_b32 s41, 0, s41")
    a("s_waitcnt lgkmcnt(0)")
    a("s_barrier")
    group(0, 0, 1, first=True)
    group(1, 1, 0)
    group(0, 2, 1)
    group(1, 3, 0)
    a("s_sub_u32 s42, s42, 1")
    a("s_cmp_lg_u32 s42, 0")
    a("s_cbranch_scc1 K3_cloop")
    a("s_waitcnt lgkmcnt(0)")
    group(0, None, 1, first=True)
    srd(a, 12, 16, WS_H1, 2048*H1S)
    a("s_lshl_b32 s26, s21, 6")
    a("s_lshl_b32 s27, s25, 5")
    a("s_add_u32 s26, s26, s27")
    a(f"s_mul_i32 s26, s26, {H1S}")
    a("s_lshl_b32 s27, s29, 1")
    a("s_add_u32 s26, s26, s27")
    a("s_mul_i32 s27, s24, 192")
    a("s_add_u32 s26, s26, s27")
    a("v_and_b32 v3, 31, v1")
    a("v_lshrrev_b32 v2, 5, v1")
    a("v_lshlrev_b32 v2, 4, v2")
    a(f"v_mul_u32_u24 v3, {H1S}, v3")
    a("v_add_u32 v2, v2, v3")
    for b in range(3):
        acc, tmp = ACC+16*b, 8+8*b
        for i in range(8):
            a(f"v_cvt_pk_bf16_f32 v{tmp+i}, v{acc+2*i}, v{acc+2*i+1}")
        for i in range(8):
            a(f"v_pk_max_i16 v{tmp+i}, v{tmp+i}, 0")
        swap_store(a, tmp, 2, 12, "s26", 64*b)
    a.raw("K3_end:")
    a("s_endpgm")
    return dict(name="k3_kernel", grid=256, block=512, lds=BRES+65536, vgpr=144)

def gen_k4(a, cfg):
    kstart(a, "k4_kernel")
    NST, NS, SLOT = 22, 8, 16384
    a("s_cmp_ge_u32 s2, 256")
    a("s_cbranch_scc1 K4_end")
    a("s_load_dwordx2 s[4:5], s[0:1], 56")
    a("s_load_dwordx2 s[16:17], s[0:1], 96")
    a("s_load_dwordx2 s[30:31], s[0:1], 80")
    wave_id(a)
    tile_map(a)
    a("s_cmp_lt_u32 s3, 4")
    a("s_cbranch_scc1 K4_cons")
    a("s_sub_u32 s23, s3, 4")
    a("s_lshl_b32 s40, s23, 12")
    a("s_mov_b32 s41, 0")
    a("s_cmp_lt_u32 s23, 2")
    a("s_cbranch_scc1 K4_ldA")
    voff_kc(a, 8, 4, H1S)
    a("s_lshl_b32 s24, s21, 6")
    a("s_sub_u32 s25, s23, 2")
    a("s_lshl_b32 s25, s25, 5")
    a("s_add_u32 s24, s24, s25")
    a(f"s_mul_i32 s44, s24, {H1S}")
    a("s_mov_b32 s45, 128")
    a("s_waitcnt lgkmcnt(0)")
    srd(a, 8, 16, WS_H1, 2048*H1S)
    a("s_branch K4_ldgo")
    a.raw("K4_ldA:")
    voff_tr(a, 8, 4, 1024)
    a("s_lshl_b32 s44, s23, 15")
    a("s_lshl_b32 s24, s22, 7")
    a("s_add_u32 s44, s44, s24")
    a("s_mov_b32 s45, 65536")
    a("s_waitcnt lgkmcnt(0)")
    srd(a, 8, 4, 0, 1376*1024)
    a.raw("K4_ldgo:")
    a.reset()
    def issue():
        dma_issue(a, 4, 8, 8, 44)
        a("s_add_u32 s44, s44, s45")
    for s in range(NS):
        issue()
        a(f"s_mov_b32 s41, {((s+1) % NS)*SLOT}")
    loader_loop(a, "K4", NST, NS, SLOT, 4, issue)
    a("s_endpgm")
    a.raw("K4_cons:")
    a.reset()
    ACC, XR, G, FR = 16, 32, 40, 64
    a("s_and_b32 s24, s3, 1")
    a("s_lshr_b32 s25, s3, 1")
    a("s_waitcnt lgkmcnt(0)")
    srd(a, 8, 16, WS_X2, 2048*1024)
    srd(a, 12, 16, WS_MODF, 3072*4)
    resid_prologue(a, 8, 12, 5, XR, G)
    srd(a, 12, 30, 0, 2048*1024)
    addr_kc(a, 56, 2)
    addr_tr(a, 60, 2)
    a("s_lshl_b32 s27, s24, 6")
    a("v_xor_b32 v60, s27, v60")
    a("s_lshl_b32 s45, s25, 12")
    a("s_add_u32 s45, s45, 8192")
    for k in range(4):
        a(f"v_add_u32 v{56+k}, s45, v{56+k}")
    for i in range(16):
        a(f"v_mov_b32 v{ACC+i}, 0")
    for i in range(32):
        a(f"v_mov_b32 v{FR+32+i}, 0")
    a("s_mov_b32 s41, 0")
    a(f"s_mov_b32 s42, {NST//2}")
    def stage(rset, cset, last=False):
        R, C = FR + 32*rset, FR + 32*cset
        if not last:
            for k in range(5):
                a(f"v_add_u32 v{8+k}, s41, v{56+k}")
            a(f"s_add_u32 s41, s41, {SLOT}")
            a(f"s_cmp_ge_u32 s41, {NS*SLOT}")
            a("s_cselect_b32 s41, 0, s41")
        a("s_waitcnt lgkmcnt(0)")
        if not last:
            a("s_barrier")
        for k in range(2 if last else 4):
            if not last:
                rd_tr(a, R+8*k, 12, k)
                rd_kc(a, R+8*k+4, 8+k)
            mfma(a, ACC, C+8*k, C+8*k+4)
    a.flush_hazards()
    a.raw("K4_cloop:")
    stage(0, 1)
    stage(1, 0)
    a("s_sub_u32 s42, s42, 1")
    a("s_cmp_lg_u32 s42, 0")
    a("s_cbranch_scc1 K4_cloop")
    stage(0, 1, last=True)
    a("s_waitcnt vmcnt(0)")
    resid_epilogue(a, ACC, XR, G, 8, 5, 12, "s26")
    a.raw("K4_end:")
    a("s_endpgm")
    return dict(name="k4_kernel", grid=256, block=512, lds=NS*SLOT, vgpr=128)

def build(cfg=None):
    cfg = cfg or {}
    a = Asm()
    ks = [g(a, cfg) for g in (gen_k0, gen_k1, gen_k2, gen_k3, gen_k4)]
    head = ["; adaLN + FNet + MLP block: 5-kernel launch list (generated by work/gen.py)"]
    for k in ks:
        head.append(f"; @launch kernel={k['name']} grid=({k['grid']},1,1) block=({k['block']},1,1) lds={k['lds']}")
    head.append('.amdgcn_target "amdgcn-amd-amdhsa--gfx950"')
    head.append(".text")
    tail = ['.section .rodata,"a"']
    for k in ks:
        tail.append(f""".p2align 6
.amdhsa_kernel {k['name']}
  .amdhsa_next_free_vgpr {k['vgpr']}
  .amdhsa_next_free_sgpr 96
  .amdhsa_accum_offset {k['vgpr']}
  .amdhsa_group_segment_fixed_size 0
  .amdhsa_kernarg_size 104
  .amdhsa_user_sgpr_count 2
  .amdhsa_user_sgpr_kernarg_segment_ptr 1
  .amdhsa_system_sgpr_workgroup_id_x 1
.end_amdhsa_kernel""")
    return "\n".join(head) + "\n" + a.text() + "\n".join(tail) + "\n"

if __name__ == "__main__":
    out = sys.argv[1] if len(sys.argv) > 1 else f"cdna_kernels/{NAME}.s"
    open(out, "w").write(build())
    print("wrote", out)
```
